```python
import torch

def _softmax(x, axis=-1):
    return torch.softmax(x, dim=axis)
def _gelu(x):
    return torch.nn.functional.gelu(x, approximate="tanh")
def _silu(x):
    return torch.nn.functional.silu(x)
def _sigmoid(x):
    return torch.sigmoid(x)
def _layernorm(x, axis=-1, eps=1e-5):
    m = x.mean(dim=axis, keepdim=True)
    v = x.var(dim=axis, keepdim=True, unbiased=False)
    return (x - m) / torch.sqrt(v + eps)
def _scatter_add(tgt, idx, src, axis=0):
    return tgt.clone().index_add_(axis, idx, src)
def _segment_sum(src, seg, n):
    out = torch.zeros((n,) + src.shape[1:], dtype=src.dtype)
    return out.index_add_(0, seg, src)
def _pad(x, pw):
    flat = tuple(v for pair in reversed(pw) for v in pair)
    return torch.nn.functional.pad(x, flat)

kernel_name = 'sequential_preLN__ssm_conv_h3__glu_gated_reglu__prompt'

def setup_inputs():

    _w = (lambda a: (lambda t: t.to(torch.bfloat16) if t.is_floating_point() else t)(torch.as_tensor(a)))
    def _A_setup():
        B, S, D = 1, 2048, 576
        ks = 4
        return {
            "q": _w((lambda *s: torch.randn(*s, dtype=torch.bfloat16) * 0.05)(B, S, D)),
            "k": _w((lambda *s: torch.randn(*s, dtype=torch.bfloat16) * 0.2)(B, S, D)),
            "v": _w((lambda *s: torch.randn(*s, dtype=torch.bfloat16) * 0.2)(B, S, D)),
            "shift_k": _w((lambda *s: torch.randn(*s, dtype=torch.bfloat16) * 0.2)(D, ks) * 0.5),
            "ssm_k": _w((lambda *s: torch.randn(*s, dtype=torch.bfloat16) * 0.4)(D, S) * (1.0 / S ** 0.5)),
            "ssm_D": _w((lambda *s: torch.randn(*s, dtype=torch.bfloat16) * 0.2)(D)),
        }
    _A_in = _A_setup()

    def _B_setup():
        B, S, D, F = 1, 2048, 576, 4608
        return {
            "x": _w((lambda *s: torch.randn(*s, dtype=torch.bfloat16) * 0.05)(B, S, D)),
            "W_gate": _w((lambda *s: torch.randn(*s, dtype=torch.bfloat16) * 0.2)(D, F) * (2.0 / D) ** 0.5),
            "W_up": _w((lambda *s: torch.randn(*s, dtype=torch.bfloat16) * 0.2)(D, F) * (2.0 / D) ** 0.5),
            "W_down": _w((lambda *s: torch.randn(*s, dtype=torch.bfloat16) * 0.2)(F, D) * (1.0 / F) ** 0.5),
        }
    _B_in = _B_setup()

    return {
        "A_q": _A_in["q"],
        "A_k": _A_in["k"],
        "A_v": _A_in["v"],
        "A_shift_k": _A_in["shift_k"],
        "A_ssm_k": _A_in["ssm_k"],
        "A_ssm_D": _A_in["ssm_D"],
        "B_x": _B_in["x"],
        "B_W_gate": _B_in["W_gate"],
        "B_W_up": _B_in["W_up"],
        "B_W_down": _B_in["W_down"],
    }

def reference(A_q, A_k, A_v, A_shift_k, A_ssm_k, A_ssm_D, B_x, B_W_gate, B_W_up, B_W_down):
    def _A_ref(q, k, v, shift_k, ssm_k, ssm_D):
        B, S, D = q.shape
        ks = shift_k.shape[-1]
        k_pad = _pad(k, ((0, 0), (ks - 1, 0), (0, 0)))
        k_shift = torch.zeros_like(k)
        for t in range(ks):
            k_shift = k_shift + k_pad[:, t:t + S, :] * shift_k[:, ks - 1 - t][None, None, :]
        kv = k_shift * v
        L = 2 * S
        kv_pad = _pad(kv, ((0, 0), (0, S), (0, 0)))
        kf_pad = _pad(ssm_k, ((0, 0), (0, S)))
        kv_f = (lambda x, axes=(-2,-1): torch.fft.rfft2(x.float(), dim=axes))(kv_pad[:, None, :, :], axes=(1, 2))
        kf_f = (lambda x, axes=(-2,-1): torch.fft.rfft2(x.float(), dim=axes))(kf_pad[:, None, :], axes=(1, 2))
        kf_f = (lambda x, *d: x.permute(*d))(kf_f, 1, 2, 0)
        y_f = kv_f * kf_f[None, :, :, :]
        y = (lambda x, s, axes=(-2,-1): torch.fft.irfft2(x, s=s, dim=axes).to(torch.bfloat16))(y_f, (1, L), axes=(1, 2))[:, 0, :S, :]
        y = y + kv * ssm_D[None, None, :]
        return q * y

    def _B_ref(x, W_gate, W_up, W_down):
        gate = torch.einsum("bsd,df->bsf", x, W_gate)
        up = torch.einsum("bsd,df->bsf", x, W_up)
        gate = gate * (lambda x, dt: x.to(dt))(gate > 0, gate.dtype)
        h = gate * up
        return torch.einsum("bsf,fd->bsd", h, W_down)

    x = A_q
    h = x + _A_ref(_layernorm(x, axis=-1), A_k, A_v, A_shift_k, A_ssm_k, A_ssm_D)
    h2 = h + _B_ref(_layernorm(h, axis=-1), B_W_gate, B_W_up, B_W_down)
    return h2
```

```python
import sys
from asmgen import Asm

S, D, F = 2048, 576, 4608
MB = 1 << 20
WS_KVR, WS_Y2T, WS_H, WS_HN, WS_HH, WS_P = 0, 4 * MB, 8 * MB, 12 * MB, 16 * MB, 48 * MB
ACT = S * D * 2
WB = D * F * 2
KA = dict(q=0, k=8, v=16, shk=24, ssk=32, ssd=40, Wg=56, Wu=64, Wd=72, out=80, dbg=88, ws=96)

def magic(div, maxq, sh=16):
    m = -(-(1 << sh) // div)
    for q in range(maxq):
        assert (q * m) >> sh == q // div, (div, q)
    assert m < (1 << 24) and maxq < (1 << 24) and m * maxq < (1 << 32)
    return m

def vr(b, n):
    return f'v[{b}:{b+n-1}]' if n > 1 else f'v{b}'
def sr(b, n):
    return f's[{b}:{b+n-1}]' if n > 1 else f's{b}'

def wave_id(a, sdst, vtmp):
    a(f'v_lshrrev_b32 v{vtmp}, 6, v0')
    a('s_nop 0')
    a(f'v_readfirstlane_b32 s{sdst}, v{vtmp}')

def unpack(a, dlo, dhi, src):
    a(f'v_lshlrev_b32 v{dlo}, 16, v{src}')
    a(f'v_and_b32 v{dhi}, 0xffff0000, v{src}')

def k1(a):
    a.begin_kernel('k1_kernel')
    a('s_cmp_ge_u32 s2, 288')
    a('s_cbranch_scc1 K1_end')
    a(f's_load_dwordx4 s[4:7], s[0:1], {KA["k"]}')
    a(f's_load_dwordx2 s[8:9], s[0:1], {KA["shk"]}')
    a(f's_load_dwordx2 s[10:11], s[0:1], {KA["ws"]}')
    a(f's_mul_hi_u32 s3, s2, {-(-(1<<32)//9)}')
    a('s_mul_i32 s12, s3, 9')
    a('s_sub_u32 s12, s2, s12')
    a('v_and_b32 v1, 7, v0')
    a('v_lshrrev_b32 v2, 3, v0')
    a('s_mul_i32 s13, s3, 73728')
    a('s_lshl_b32 s14, s12, 7')
    a('s_add_u32 s13, s13, s14')
    a('v_mul_u32_u24 v3, 2304, v2')
    a('v_lshl_add_u32 v3, v1, 4, v3')
    a('v_add_u32 v3, s13, v3')
    a('v_subrev_u32 v4, 3456, v3')
    a('v_subrev_u32 v5, 2304, v3')
    a('v_subrev_u32 v6, 1152, v3')
    a('s_lshl_b32 s15, s12, 9')
    a('v_lshlrev_b32 v7, 6, v1')
    a('s_waitcnt lgkmcnt(0)')
    a.srd(16, 4, ACT)
    a.srd(20, 6, ACT)
    a.srd(24, 8, D * 8)
    a.srd(28, 10, ACT, WS_KVR)
    a('buffer_load_dwordx4 v[8:11], v4, s[16:19], 0 offen')
    a('buffer_load_dwordx4 v[12:15], v5, s[16:19], 0 offen')
    a('buffer_load_dwordx4 v[16:19], v6, s[16:19], 0 offen')
    a('buffer_load_dwordx4 v[20:23], v3, s[16:19], 0 offen')
    a('buffer_load_dwordx4 v[24:27], v3, s[16:19], 0 offen offset:1152')
    for i in range(4):
        a(f'buffer_load_dwordx4 {vr(36+4*i,4)}, v7, s[24:27], s15 offen offset:{16*i}')
    a('buffer_load_dwordx4 v[28:31], v3, s[20:23], 0 offen')
    a('buffer_load_dwordx4 v[32:35], v3, s[20:23], 0 offen offset:1152')
    a('v_sub_u32 v52, 31, v2')
    a('v_lshlrev_b32 v53, 2, v1')
    a('v_xor_b32 v52, v52, v53')
    a('v_lshlrev_b32 v52, 2, v52')
    a('v_lshl_add_u32 v52, v1, 10, v52')
    a('v_lshrrev_b32 v53, 3, v2')
    a('v_xor_b32 v54, v1, v53')
    a('v_lshlrev_b32 v54, 4, v54')
    a('v_lshl_add_u32 v54, v2, 7, v54')
    a('v_xor_b32 v55, 64, v54')
    a('s_lshl_b32 s13, s12, 18')
    a('s_lshl_b32 s14, s3, 7')
    a('s_sub_u32 s13, s13, s14')
    a('s_add_u32 s13, s13, 3968')
    a('v_lshlrev_b32 v56, 12, v2')
    a('v_lshl_add_u32 v56, v1, 4, v56')
    a('v_add_u32 v56, s13, v56')
    a('v_add_u32 v57, 0x20000, v56')
    a('s_waitcnt vmcnt(0)')
    for p in range(4):
        for i in range(5):
            unpack(a, 60 + 2 * i, 61 + 2 * i, 8 + 4 * i + p)
        unpack(a, 70, 71, 28 + p)
        unpack(a, 72, 73, 32 + p)
        for hsel in range(2):
            c = 2 * p + hsel
            unpack(a, 74, 75, 36 + 2 * c)
            unpack(a, 76, 77, 37 + 2 * c)
            kk = lambda i: 60 + 2 * i + hsel
            a(f'v_mul_f32 v78, v77, v{kk(0)}')
            a(f'v_mul_f32 v79, v77, v{kk(1)}')
            a(f'v_fmac_f32 v78, v76, v{kk(1)}')
            a(f'v_fmac_f32 v79, v76, v{kk(2)}')
            a(f'v_fmac_f32 v78, v75, v{kk(2)}')
            a(f'v_fmac_f32 v79, v75, v{kk(3)}')
            a(f'v_fmac_f32 v78, v74, v{kk(3)}')
            a(f'v_fmac_f32 v79, v74, v{kk(4)}')
            a(f'v_mul_f32 v78, v78, v{70+hsel}')
            a(f'v_mul_f32 v79, v79, v{72+hsel}')
            a(f'v_cvt_pk_bf16_f32 v{80+c}, v79, v78')
            a(f'ds_write_b32 v52, v{80+c} offset:{128*c}')
    a('s_waitcnt lgkmcnt(0)')
    a('s_barrier')
    a('ds_read_b128 v[8:11], v54')
    a('ds_read_b128 v[12:15], v55 offset:4096')
    a('s_waitcnt lgkmcnt(1)')
    a('buffer_store_dwordx4 v[8:11], v56, s[28:31], 0 offen')
    a('s_waitcnt lgkmcnt(0)')
    a('buffer_store_dwordx4 v[12:15], v57, s[28:31], 0 offen')
    a.label('K1_end')
    a('s_endpgm')
    a.end_kernel(88, 32)
    a.launch('k1_kernel', 288, 256, 8192)

CP = 4160
KVO = 8 * CP
def k2(a):
    a.begin_kernel('k2_kernel')
    a(f's_cmp_ge_u32 s2, {D}')
    a('s_cbranch_scc1 K2_end')
    a(f's_load_dwordx4 s[4:7], s[0:1], {KA["ssk"]}')
    a(f's_load_dwordx2 s[10:11], s[0:1], {KA["ws"]}')
    wave_id(a, 3, 1)
    a('s_lshl_b32 s12, s2, 12')
    a('v_lshlrev_b32 v1, 4, v0')
    a('v_subrev_u32 v2, 16, v1')
    a('s_lshl_b32 s13, s2, 1')
    a('s_and_b32 s13, s13, -4')
    a('s_waitcnt lgkmcnt(0)')
    a('s_load_dword s14, s[6:7], s13')
    a('s_add_u32 s16, s4, s12')
    a('s_addc_u32 s17, s5, 0')
    a('s_mov_b32 s18, 4096')
    a('s_mov_b32 s19, 0x00020000')
    a.srd(20, 10, ACT, WS_KVR)
    a.srd(24, 10, ACT, WS_Y2T)
    a('buffer_load_dwordx4 v[8:11], v2, s[16:19], 0 offen')
    a('buffer_load_dwordx4 v[12:15], v1, s[16:19], 0 offen')
    a('s_lshl_b32 s15, s3, 10')
    a(f's_add_u32 m0, s15, {KVO}')
    a('s_nop 0')
    a('buffer_load_dwordx4 v1, s[20:23], s12 offen lds')
    a(f'v_add_u32 v3, {KVO+4096}, v1')
    a('v_subrev_u32 v4, 32, v0')
    a(f'v_mul_u32_u24 v4, {CP}, v4')
    a('v_cmp_gt_u32 vcc, 32, v0')
    for i in range(4):
        a(f'v_mov_b32 v{16+i}, 0')
    a('v_cndmask_b32 v3, v4, v3, vcc')
    a('v_cmp_gt_u32 vcc, 40, v0')
    a('s_and_saveexec_b64 s[28:29], vcc')
    a('ds_write_b128 v3, v[16:19]')
    a('s_mov_b64 exec, s[28:29]')
    a('v_and_b32 v4, 15, v0')
    a('v_bfe_u32 v5, v0, 4, 2')
    a('v_and_b32 v6, 7, v4')
    a(f'v_mul_u32_u24 v6, {CP}, v6')
    a('v_lshrrev_b32 v7, 3, v4')
    a('v_add_u32 v7, v7, v5')
    a('v_lshl_add_u32 v6, v7, 4, v6')
    a('s_lshl_b32 s15, s3, 7')
    a('v_add_u32 v6, s15, v6')
    a('v_lshlrev_b32 v7, 4, v5')
    a('v_lshlrev_b32 v16, 5, v4')
    a('v_sub_u32 v7, v7, v16')
    a(f's_add_u32 s15, s15, {KVO + 480}')
    a('v_add_u32 v7, s15, v7')
    for i in range(32):
        a(f'v_mov_b32 v{136+i}, 0')
    a('s_waitcnt vmcnt(1)')
    for j in range(7):
        a(f'v_alignbit_b32 v{20+j}, v{9+j}, v{8+j}, 16')
    for j in range(6):
        a(f'v_mov_b32 v{28+j}, v{9+j}')
    for j in range(6):
        a(f'v_alignbit_b32 v{36+j}, v{10+j}, v{9+j}, 16')
    src = {0: 20, 1: 28, 2: 36, 3: 10, 4: 22, 5: 30, 6: 38, 7: 12}
    for c in (3, 7, 0, 4, 1, 5, 2, 6):
        a(f'ds_write_b128 v1, {vr(src[c],4)} offset:{c*CP+16}')
    a('s_waitcnt vmcnt(0) lgkmcnt(0)')
    a('s_barrier')
    def rd(res):
        A0, G0 = 8 + 64 * res, 40 + 64 * res
        ops = []
        for i in range(8):
            ops.append(('A', i, f'ds_read_b128 {vr(A0+4*i,4)}, v6 offset:{512*i+64*res}'))
            ops.append(('G', i, f'ds_read_b128 {vr(G0+4*i,4)}, v7 offset:{512*(7-i)+64*res}'))
        return ops
    q = []
    def issue(op, res):
        a(op[2]); q.append((res, op[0], op[1]))
    def need(tags):
        idx = max([q.index(t) for t in tags if t in q], default=-1)
        if idx >= 0:
            n = len(q) - 1 - idx
            a(f's_waitcnt lgkmcnt({min(n,15)})')
            del q[:idx + 1]
    r0, r1 = rd(0), rd(1)
    for op in r0[:14]:
        issue(op, 0)
    pend = [(op, 0) for op in r0[14:]] + [(op, 1) for op in r1]
    for res in range(2):
        A0, G0 = 8 + 64 * res, 40 + 64 * res
        pairs = sorted([(m, t) for m in range(8) for t in range(8) if m + t < 8], key=lambda p: (max(p), p[0] + p[1]))
        for (m, t) in pairs:
            while pend and (res, 'A', m) not in q and any(p[1] == res and p[0][0] == 'A' and p[0][1] == m for p in pend):
                op, rr = pend.pop(0); issue(op, rr)
            while pend and (res, 'G', t) not in q and any(p[1] == res and p[0][0] == 'G' and p[0][1] == t for p in pend):
                op, rr = pend.pop(0); issue(op, rr)
            need([(res, 'A', m), (res, 'G', t)])
            n = m + t
            a(f'v_mfma_f32_16x16x32_bf16 {vr(136+4*n,4)}, {vr(A0+4*m,4)}, {vr(G0+4*t,4)}, {vr(136+4*n,4)}')
            if pend and len(q) < 14:
                op, rr = pend.pop(0); issue(op, rr)
    a('v_lshlrev_b32 v8, 5, v4')
    a('v_lshl_add_u32 v8, v5, 3, v8')
    a('s_lshl_b32 s15, s3, 10')
    a(f's_sub_u32 s28, {KVO + 4088 - 512}, s15')
    a('v_sub_u32 v9, s28, v8')
    a('ds_read_b64 v[10:11], v9 offset:512')
    a('ds_read_b64 v[12:13], v9')
    a('s_barrier')
    a('v_and_b32 v14, 63, v0')
    a('v_lshlrev_b32 v14, 4, v14')
    a('s_lshl_b32 s28, s3, 13')
    a('v_add_u32 v15, s28, v14')
    a('s_lshl_b32 s28, s3, 11')
    a('v_add_u32 v14, s28, v14')
    a('s_nop 4')
    for n in range(8):
        a(f'ds_write_b128 v15, {vr(136+4*n,4)} offset:{1024*n}')
    a('s_lshl_b32 s28, s14, 16')
    a('s_and_b32 s29, s14, 0xffff0000')
    a('s_bitcmp1_b32 s2, 0')
    a('s_cselect_b32 s14, s29, s28')
    a('s_add_u32 s15, s15, s12')
    a('s_waitcnt lgkmcnt(0)')
    a('s_barrier')
    for i in range(2):
        for w in range(4):
            a(f'ds_read_b128 {vr(16+16*i+4*w,4)}, v14 offset:{8192*w+1024*i}')
    for i in range(2):
        a(f's_waitcnt lgkmcnt({4*(1-i)})')
        b = 16 + 16 * i
        for r in range(4):
            a(f'v_add_f32 v{b+r}, v{b+r}, v{b+4+r}')
            a(f'v_add_f32 v{b+8+r}, v{b+8+r}, v{b+12+r}')
        unpack(a, 51, 50, 10 + 2 * i)
        unpack(a, 49, 48, 11 + 2 * i)
        for r in range(4):
            a(f'v_add_f32 v{b+r}, v{b+r}, v{b+8+r}')
        for r in range(4):
            a(f'v_fmac_f32 v{b+r}, s14, v{48+r}')
        a(f'v_cvt_pk_bf16_f32 v{52+2*i}, v{b}, v{b+1}')
        a(f'v_cvt_pk_bf16_f32 v{53+2*i}, v{b+2}, v{b+3}')
        a(f'buffer_store_dwordx2 {vr(52+2*i,2)}, v8, s[24:27], s15 offen offset:{512*i}')
    a.label('K2_end')
    a('s_endpgm')
    a.end_kernel(168, 32)
    a.launch('k2_kernel', D, 256, KVO + 4608)

def wave_rowsum(a, v, t):
    a('s_nop 1')
    a(f'v_add_f32_dpp v{v}, v{v}, v{v} row_ror:8 row_mask:0xf bank_mask:0xf')
    a(f'v_mov_b32 v{t}, v{v}')
    a('s_nop 1')
    a(f'v_permlane16_swap_b32 v{v}, v{t}')
    a(f'v_add_f32 v{v}, v{v}, v{t}')
    a(f'v_mov_b32 v{t}, v{v}')
    a('s_nop 1')
    a(f'v_permlane32_swap_b32 v{v}, v{t}')
    a(f'v_add_f32 v{v}, v{v}, v{t}')

def ln_stats(a, X, off):
    a(f'v_add_f32 v40, v{X}, v{X+1}')
    a(f'v_add_f32 v41, v{X+2}, v{X+3}')
    a(f'v_add_f32 v42, v{X+4}, v{X+5}')
    a(f'v_add_f32 v43, v{X+6}, v{X+7}')
    a('v_add_f32 v40, v40, v41')
    a('v_add_f32 v42, v42, v43')
    a('v_add_f32 v40, v40, v42')
    wave_rowsum(a, 40, 42)
    a('v_mul_f32 v40, 0x3c800000, v40')
    a(f'v_sub_f32 v42, v{X}, v40')
    a('v_mul_f32 v41, v42, v42')
    for i in range(1, 8):
        a(f'v_sub_f32 v42, v{X+i}, v40')
        a('v_fmac_f32 v41, v42, v42')
    wave_rowsum(a, 41, 42)
    a('s_mov_b64 exec, 0xff')
    a(f'ds_write_b64 v6, v[40:41] offset:{off}')
    a('s_mov_b64 exec, -1')
    a('s_waitcnt lgkmcnt(0)')
    a('s_barrier')
    for i in range(4):
        a(f'ds_read_b128 {vr(44+4*i,4)}, v7 offset:{off+16*i}')
    a(f'ds_read_b64 v[60:61], v7 offset:{off+64}')
    a('s_waitcnt lgkmcnt(0)')
    a('v_add_f32 v40, v44, v46')
    a('v_add_f32 v41, v45, v47')
    for i in range(2, 9):
        a(f'v_add_f32 v40, v40, v{44+2*i}')
        a(f'v_add_f32 v41, v41, v{45+2*i}')
    a('v_mul_f32 v40, 0x3de38e39, v40')
    a('v_sub_f32 v42, v44, v40')
    a('v_mul_f32 v43, v42, v42')
    for i in range(1, 9):
        a(f'v_sub_f32 v42, v{44+2*i}, v40')
        a('v_fmac_f32 v43, v42, v42')
    a('v_fmac_f32 v41, 0x42800000, v43')
    a('v_mov_b32 v42, 0x3727c5ac')
    a('v_fmac_f32 v42, 0x3ae38e39, v41')
    a('v_rsq_f32 v41, v42')
    a('s_nop 0')

def k3(a):
    a.begin_kernel('k3_kernel')
    a('s_cmp_ge_u32 s2, 256')
    a('s_cbranch_scc1 K3_end')
    a(f's_load_dwordx2 s[4:5], s[0:1], {KA["q"]}')
    a(f's_load_dwordx2 s[10:11], s[0:1], {KA["ws"]}')
    wave_id(a, 3, 1)
    a('s_and_b32 s12, s2, 7')
    a('s_lshl_b32 s12, s12, 5')
    a('s_lshr_b32 s13, s2, 3')
    a('s_add_u32 s12, s12, s13')
    a('v_and_b32 v1, 7, v0')
    a('v_lshrrev_b32 v2, 3, v0')
    a('v_lshlrev_b32 v3, 12, v0')
    a('s_lshl_b32 s13, s12, 4')
    a('v_mul_u32_u24 v4, 1152, v1')
    a('v_lshl_add_u32 v4, v2, 4, v4')
    a('s_mul_i32 s14, s12, 9216')
    a('s_waitcnt lgkmcnt(0)')
    a.srd(16, 4, ACT)
    a.srd(20, 10, ACT, WS_Y2T)
    a.srd(24, 10, ACT, WS_H)
    a.srd(28, 10, ACT, WS_HN)
    a('s_lshl_b32 m0, s3, 10')
    a('buffer_load_dwordx4 v[8:11], v4, s[16:19], s14 offen')
    a('buffer_load_dwordx4 v3, s[20:23], s13 offen lds')
    a('v_and_b32 v5, 0x3f0, v0')
    a('v_lshlrev_b32 v5, 4, v5')
    a('v_bfe_u32 v6, v0, 1, 1')
    a('v_lshl_add_u32 v5, v6, 7, v5')
    a('v_bfe_u32 v6, v0, 2, 2')
    a('v_lshl_add_u32 v5, v6, 4, v5')
    a('v_and_b32 v6, 1, v0')
    a('v_lshl_add_u32 v5, v6, 3, v5')
    a('v_mul_u32_u24 v7, 80, v1')
    a('s_lshl_b32 s15, s3, 3')
    a('v_add_u32 v6, s15, v7')
    a('v_lshrrev_b32 v12, 1, v2')
    a('v_lshlrev_b32 v12, 10, v12')
    a('v_and_b32 v13, 1, v2')
    a('v_lshl_add_u32 v12, v13, 9, v12')
    a('v_lshl_add_u32 v12, v1, 4, v12')
    a('s_lshr_b32 s15, s12, 2')
    a('s_mul_i32 s15, s15, 36864')
    a('s_and_b32 s13, s12, 3')
    a('s_lshl_b32 s13, s13, 7')
    a('s_add_u32 s15, s15, s13')
    a('s_waitcnt vmcnt(1)')
    for i in range(4):
        unpack(a, 16 + 2 * i, 17 + 2 * i, 8 + i)
    ln_stats(a, 16, 9216)
    a('s_waitcnt vmcnt(0)')
    a('ds_read_b64_tr_b16 v[8:9], v5')
    a('ds_read_b64_tr_b16 v[10:11], v5 offset:64')
    for i in range(8):
        a(f'v_sub_f32 v{24+i}, v{16+i}, v40')
    for i in range(8):
        a(f'v_mul_f32 v{24+i}, v{24+i}, v41')
    a('s_waitcnt lgkmcnt(0)')
    for i in range(4):
        unpack(a, 32 + 2 * i, 33 + 2 * i, 8 + i)
    for i in range(8):
        a(f'v_fmac_f32 v{16+i}, v{24+i}, v{32+i}')
    for i in range(4):
        a(f'v_cvt_pk_bf16_f32 v{8+i}, v{16+2*i}, v{17+2*i}')
    a('buffer_store_dwordx4 v[8:11], v4, s[24:27], s14 offen')
    for i in range(4):
        unpack(a, 16 + 2 * i, 17 + 2 * i, 8 + i)
    ln_stats(a, 16, 9216 + 640)
    for i in range(8):
        a(f'v_sub_f32 v{16+i}, v{16+i}, v40')
    for i in range(8):
        a(f'v_mul_f32 v{16+i}, v{16+i}, v41')
    for i in range(4):
        a(f'v_cvt_pk_bf16_f32 v{24+i}, v{16+2*i}, v{17+2*i}')
    a('buffer_store_dwordx4 v[24:27], v12, s[28:31], s15 offen')
    a.label('K3_end')
    a('s_endpgm')
    a.end_kernel(64, 32)
    a.launch('k3_kernel', 256, 576, 9216 + 1280)

class Gemm:
    def __init__(self, a, name, KS, J, SLOT, NST, ACC, FR, vAb, vAc, vBb, vBc, aimm, abase, bimm, dma, dma_adv, sT, sCur, sWr):
        self.__dict__.update(locals())
        self.q = []
    def reads(self, kk, st):
        fa = self.FR + 20 * st
        fb = fa + 12
        def A(t):
            return [((st, 'A', t), f'ds_read_b64_tr_b16 {vr(fa+4*t+2*q,2)}, v{self.vAc[self.abase(t)]} offset:{self.aimm(kk,t,q)}') for q in range(2)]
        def B(u):
            return [((st, 'B', u), f'ds_read_b128 {vr(fb+4*u,4)}, v{self.vBc} offset:{self.bimm(kk,u)}')]
        return B(0) + A(0) + B(1) + A(1) + A(2)
    def issue(self, op):
        self.a(op[1]); self.q.append(op[0])
    def need(self, tags):
        idx = max([i for i, t in enumerate(self.q) if t in tags], default=-1)
        if idx >= 0:
            self.a(f's_waitcnt lgkmcnt({len(self.q)-1-idx})')
            del self.q[:idx + 1]
    def set_cur(self):
        a = self.a
        for b, c in zip(self.vAb, self.vAc):
            a(f'v_add_u32 v{c}, s{self.sCur}, v{b}')
        a(f'v_add_u32 v{self.vBc}, s{self.sCur}, v{self.vBb}')
    def emit(self):
        a, J, KS = self.a, self.J, self.KS
        a(f's_mov_b32 s{self.sWr}, 0')
        for t in range(3):
            for j in range(J):
                for l in self.dma(j):
                    a(l)
                    if l.startswith('s_add_u32 m0'): a('s_nop 0')
            for l in self.dma_adv(False): a(l)
            a(f's_add_u32 s{self.sWr}, s{self.sWr}, {self.SLOT}')
        for i in range(96):
            a(f'v_mov_b32 v{self.ACC+i}, 0')
        a(f's_mov_b32 s{self.sCur}, 0')
        a(f's_mov_b32 s{self.sT}, 0')
        self.set_cur()
        a(f's_waitcnt vmcnt({2*J})')
        a('s_barrier')
        for op in self.reads(0, 0):
            self.issue(op)
        q0 = list(self.q)
        a.label(self.name + '_loop')
        a(f's_waitcnt vmcnt({J})')
        a('s_barrier')
        jobs = [self.dma(j) for j in range(J)]
        nm = 6 * KS
        at = {}
        for j in range(J):
            at.setdefault(1 + (j * (nm - 2)) // J, []).append(j)
        mi = 0
        for kk in range(KS):
            st = kk & 1
            last = kk == KS - 1
            if last:
                a(f's_add_u32 s{self.sCur}, s{self.sCur}, {self.SLOT}')
                a(f's_cmp_ge_u32 s{self.sCur}, {4*self.SLOT}')
                a(f's_cselect_b32 s{self.sCur}, 0, s{self.sCur}')
                self.set_cur()
            nxt = self.reads(0 if last else kk + 1, st ^ 1)
            fa = self.FR + 20 * st
            fb = fa + 12
            for t in range(3):
                for u in range(2):
                    self.need([(st, 'A', t), (st, 'B', u)])
                    for j in at.get(mi, []):
                        a(jobs[j][0])
                    acc = self.ACC + 16 * (2 * t + u)
                    a(f'v_mfma_f32_32x32x16_bf16 {vr(acc,16)}, {vr(fa+4*t,4)}, {vr(fb+4*u,4)}, {vr(acc,16)}')
                    for j in at.get(mi, []):
                        assert len(at[mi]) == 1
                        for l in jobs[j][1:]: a(l)
                    for _ in range(2):
                        if nxt: self.issue(nxt.pop(0))
                    mi += 1
            assert not nxt
        assert self.q == q0, (self.q, q0)
        for l in self.dma_adv(True): a(l)
        a(f's_add_u32 s{self.sWr}, s{self.sWr}, {self.SLOT}')
        a(f's_cmp_ge_u32 s{self.sWr}, {4*self.SLOT}')
        a(f's_cselect_b32 s{self.sWr}, 0, s{self.sWr}')
        a(f's_add_u32 s{self.sT}, s{self.sT}, 1')
        a(f's_cmp_lt_u32 s{self.sT}, {self.NST}')
        a(f's_cbranch_scc1 {self.name}_loop')
        a('s_waitcnt lgkmcnt(0)')

def k4(a):
    UPO, HNO, DUM, SLOT = 9344, 18688, 35072, 36096
    a.begin_kernel('k4_kernel')
    a('s_cmp_ge_u32 s2, 256')
    a('s_cbranch_scc1 K4_end')
    a(f's_load_dwordx4 s[4:7], s[0:1], {KA["Wg"]}')
    a(f's_load_dwordx2 s[10:11], s[0:1], {KA["ws"]}')
    wave_id(a, 3, 1)
    a('s_and_b32 s12, s2, 4')
    a('s_bfe_u32 s13, s2, 0x20003')
    a('s_add_u32 s12, s12, s13')
    a('s_and_b32 s13, s2, 3')
    a('s_lshl_b32 s13, s13, 3')
    a('s_lshr_b32 s14, s2, 5')
    a('s_add_u32 s13, s13, s14')
    a('v_and_b32 v1, 63, v0')
    a(f's_mul_hi_u32 s15, s3, {-(-(1<<32)//3)}')
    a('s_mul_i32 s14, s15, 3')
    a('s_sub_u32 s14, s3, s14')
    a('s_waitcnt lgkmcnt(0)')
    a(f's_add_u32 s8, s10, {WS_HN}')
    a('s_addc_u32 s9, s11, 0')
    for i in range(3):
        R = 16 + 4 * i
        lw, lh, le = a.newlabel('K4w'), a.newlabel('K4h'), a.newlabel('K4e')
        a(f's_add_u32 s40, s3, {12*i}')
        a(f's_mov_b32 s{R+3}, 0x00020000')
        a(f's_mov_b32 s{28+i}, 0')
        a('s_cmp_ge_u32 s40, 18')
        a(f's_cbranch_scc1 {lh}')
        a('s_cmp_ge_u32 s40, 9')
        a(f's_cselect_b32 s{R}, s6, s4')
        a(f's_cselect_b32 s{R+1}, s7, s5')
        a(f's_cselect_b32 s41, {UPO-9*1024}, 0')
        a('s_cselect_b32 s42, 9, 0')
        a(f's_mov_b32 s{R+2}, {WB}')
        a(f's_mov_b32 s{31+i}, {32*9216}')
        a('s_lshl_b32 s43, s40, 10')
        a(f's_add_u32 s{34+i}, s43, s41')
        a('s_sub_u32 s42, s40, s42')
        a('s_lshl_b32 s42, s42, 6')
        a('v_add_u32 v5, s42, v1')
        a(f'v_mul_u32_u24 v6, {magic(18,576)}, v5')
        a('v_lshrrev_b32 v6, 16, v6')
        a('v_mul_u32_u24 v7, 18, v6')
        a('v_sub_u32 v5, v5, v7')
        a('v_mul_u32_u24 v6, 9216, v6')
        a('v_lshl_add_u32 v6, v5, 4, v6')
        a('s_mul_i32 s42, s13, 288')
        a(f'v_add_u32 v{2+i}, s42, v6')
        a(f's_branch {le}')
        a.label(lh)
        a(f's_mov_b32 s{R}, s8')
        a(f's_mov_b32 s{R+1}, s9')
        a('s_cmp_ge_u32 s40, 34')
        a(f's_cselect_b32 s{R+2}, 0, {ACT}')
        a('s_min_u32 s40, s40, 34')
        a(f's_mov_b32 s{31+i}, 2048')
        a('s_sub_u32 s42, s40, 18')
        a('s_lshl_b32 s43, s42, 10')
        a(f's_add_u32 s{34+i}, s43, {HNO}')
        a('s_lshr_b32 s43, s42, 1')
        a('s_lshl_b32 s41, s12, 3')
        a('s_add_u32 s43, s43, s41')
        a('s_mul_i32 s43, s43, 36')
        a('s_and_b32 s42, s42, 1')
        a('s_add_u32 s43, s43, s42')
        a('s_lshl_b32 s43, s43, 10')
        a('v_lshlrev_b32 v5, 4, v1')
        a(f'v_add_u32 v{2+i}, s43, v5')
        a.label(le)
    a('v_bfe_u32 v5, v1, 4, 1')
    a(f'v_mul_u32_u24 v8, {UPO}, v5')
    a('v_lshrrev_b32 v5, 5, v1')
    a('v_bfe_u32 v6, v1, 2, 2')
    a('v_lshl_add_u32 v5, v5, 3, v6')
    a('v_mul_u32_u24 v5, 288, v5')
    a('v_add_u32 v8, v8, v5')
    a('v_and_b32 v5, 1, v1')
    a('v_lshl_add_u32 v8, v5, 4, v8')
    a('v_bfe_u32 v5, v1, 1, 1')
    a('v_lshl_add_u32 v8, v5, 3, v8')
    a('s_mul_i32 s40, s14, 96')
    a('v_add_u32 v8, s40, v8')
    a('s_lshl_b32 s40, s15, 12')
    a('v_lshlrev_b32 v9, 4, v1')
    a('v_add_u32 v9, s40, v9')
    def dma(j):
        return [f's_add_u32 m0, s{34+j}, s46', f'buffer_load_dwordx4 v{2+j}, {sr(16+4*j,4)}, s{28+j} offen lds']
    def adv(inloop):
        r = [f's_add_u32 s{28+j}, s{28+j}, s{31+j}' for j in range(3)]
        if inloop:
            r += ['s_cmp_ge_u32 s44, 14'] + [f's_cselect_b32 s{18+4*j}, 0, s{18+4*j}' for j in range(3)]
        return r
    g = Gemm(a, 'K4', KS=2, J=3, SLOT=SLOT, NST=18, ACC=72, FR=32, vAb=[8], vAc=[10], vBb=9, vBc=11,
             aimm=lambda kk, t, q: (16 * kk + 4 * q) * 288 + 32 * t, abase=lambda t: 0,
             bimm=lambda kk, u: HNO + u * 2048 + kk * 1024, dma=dma, dma_adv=adv, sT=44, sCur=45, sWr=46)
    g.emit()
    a.srd(16, 10, S * F * 2, WS_HH)
    a('s_lshl_b32 s40, s12, 3')
    a('s_lshl_b32 s41, s15, 1')
    a('s_add_u32 s40, s40, s41')
    a('s_mul_i32 s40, s40, 288')
    a('s_mul_i32 s41, s13, 9')
    a('s_add_u32 s40, s40, s41')
    a('s_mul_i32 s41, s14, 3')
    a('s_add_u32 s40, s40, s41')
    a('s_lshl_b32 s40, s40, 10')
    a(f's_add_u32 s41, s40, {288*1024}')
    a('v_lshlrev_b32 v2, 4, v1')
    a('s_nop 7')
    for t in range(3):
        for u in range(2):
            acc = 72 + 16 * (2 * t + u)
            o = 32 + 4 * ((2 * t + u) % 4)
            for i in range(8):
                a(f'v_max_f32 v{acc+i}, 0, v{acc+i}')
            for i in range(8):
                a(f'v_mul_f32 v{acc+i}, v{acc+i}, v{acc+8+i}')
            for i in range(4):
                a(f'v_cvt_pk_bf16_f32 v{o+i}, v{acc+2*i}, v{acc+2*i+1}')
            a(f'buffer_store_dwordx4 {vr(o,4)}, v2, s[16:19], s{40+u} offen offset:{1024*t}')
    a.label('K4_end')
    a('s_endpgm')
    a.end_kernel(168, 48)
    a.launch('k4_kernel', 256, 768, 4 * SLOT)

def k5(a):
    BO, SLOT = 24576, 40960
    a.begin_kernel('k5_kernel')
    a('s_cmp_ge_u32 s2, 192')
    a('s_cbranch_scc1 K5_end')
    a(f's_load_dwordx2 s[4:5], s[0:1], {KA["Wd"]}')
    a(f's_load_dwordx2 s[10:11], s[0:1], {KA["ws"]}')
    wave_id(a, 3, 1)
    a('s_and_b32 s12, s2, 4')
    a('s_lshl_b32 s12, s12, 1')
    a('s_bfe_u32 s13, s2, 0x30003')
    a('s_add_u32 s12, s12, s13')
    a('s_lshr_b32 s13, s2, 6')
    a('s_and_b32 s47, s2, 3')
    a('v_and_b32 v1, 63, v0')
    a('s_lshr_b32 s15, s3, 1')
    a('s_and_b32 s14, s3, 1')
    a('s_waitcnt lgkmcnt(0)')
    a.srd(16, 4, WB)
    a.srd(20, 10, S * F * 2, WS_HH)
    a(f's_mul_i32 s28, s47, {1152*1152}')
    a(f's_mul_i32 s29, s47, {72*1024}')
    a('s_mul_i32 s34, s3, 6144')
    a('s_lshl_b32 s35, s3, 12')
    a(f's_add_u32 s35, s35, {BO}')
    a('s_mul_i32 s40, s3, 384')
    a('s_mul_i32 s41, s13, 384')
    for i in range(6):
        a(f's_add_u32 s42, s40, {64*i}')
        a('v_add_u32 v12, s42, v1')
        a(f'v_mul_u32_u24 v13, {magic(24,1536)}, v12')
        a('v_lshrrev_b32 v13, 16, v13')
        a('v_mul_u32_u24 v14, 24, v13')
        a('v_sub_u32 v12, v12, v14')
        a('v_and_b32 v14, 2, v13')
        a('v_lshlrev_b32 v14, 1, v14')
        a('v_xor_b32 v12, v12, v14')
        a('v_mul_u32_u24 v13, 1152, v13')
        a('v_lshl_add_u32 v13, v12, 4, v13')
        a(f'v_add_u32 v{2+i}, s41, v13')
    a('s_lshl_b32 s40, s12, 2')
    a('s_add_u32 s40, s40, s3')
    a(f's_mul_i32 s40, s40, {288*1024}')
    a('v_lshlrev_b32 v12, 4, v1')
    a('v_add_u32 v8, s40, v12')
    a('v_lshrrev_b32 v12, 5, v1')
    a('v_bfe_u32 v13, v1, 2, 2')
    a('v_lshl_add_u32 v12, v12, 3, v13')
    a('v_mul_u32_u24 v12, 384, v12')
    a('v_and_b32 v13, 1, v1')
    a('v_lshl_add_u32 v12, v13, 5, v12')
    a('v_bfe_u32 v13, v1, 4, 1')
    a('v_lshl_add_u32 v12, v13, 4, v12')
    a('v_bfe_u32 v13, v1, 1, 1')
    a('v_lshl_add_u32 v12, v13, 3, v12')
    a('s_mul_i32 s40, s14, 192')
    a('v_add_u32 v12, s40, v12')
    a('v_bfe_u32 v13, v1, 3, 1')
    a('s_cmp_eq_u32 s14, 0')
    a('s_cselect_b32 s40, 64, -64')
    a('v_mul_lo_u32 v13, v13, s40')
    a('v_add_u32 v9, v12, v13')
    a('v_sub_u32 v10, v12, v13')
    a('s_lshl_b32 s40, s15, 13')
    a('v_lshlrev_b32 v11, 4, v1')
    a('v_add_u32 v11, s40, v11')
    a('s_add_u32 s36, s34, 0')
    def dma(j):
        if j < 6:
            return [f's_add_u32 m0, s36, {1024*j}', f'buffer_load_dwordx4 v{2+j}, s[16:19], s28 offen lds']
        return ['s_add_u32 m0, s35, s46', f'buffer_load_dwordx4 v8, s[20:23], s29 offen offset:{1024*(j-6)} lds']
    def adv(inloop):
        r = [f's_add_u32 s28, s28, {64*1152}', 's_add_u32 s29, s29, 4096',
             f's_add_u32 s36, s36, {SLOT}', f's_cmp_ge_u32 s36, {4*SLOT}', 's_cselect_b32 s36, s34, s36']
        if inloop:
            r += ['s_cmp_ge_u32 s44, 14', 's_cselect_b32 s18, 0, s18', 's_cselect_b32 s22, 0, s22']
        return r
    g = Gemm(a, 'K5', KS=4, J=10, SLOT=SLOT, NST=18, ACC=72, FR=32, vAb=[9, 10], vAc=[12, 13], vBb=11, vBc=14,
             aimm=lambda kk, t, q: (16 * kk + 4 * q) * 384 + 64 * t, abase=lambda t: t & 1,
             bimm=lambda kk, u: BO + u * 4096 + kk * 1024, dma=dma, dma_adv=adv, sT=44, sCur=45, sWr=46)
    g.emit()
    a.srd(16, 10, 4 * S * D * 4, WS_P)
    a('s_lshl_b32 s40, s47, 6')
    a('s_lshl_b32 s41, s12, 2')
    a('s_add_u32 s40, s40, s41')
    a('s_lshl_b32 s41, s15, 1')
    a('s_add_u32 s40, s40, s41')
    a('s_mul_i32 s40, s40, 18')
    a('s_mul_i32 s41, s13, 6')
    a('s_add_u32 s40, s40, s41')
    a('s_mul_i32 s41, s14, 3')
    a('s_add_u32 s40, s40, s41')
    a('s_lshl_b32 s40, s40, 12')
    a('v_lshlrev_b32 v2, 4, v1')
    a('s_nop 7')
    for t in range(3):
        for u in range(2):
            acc = 72 + 16 * (2 * t + u)
            a(f's_add_u32 s41, s40, {(18*u+t)*4096}')
            for i in range(4):
                a(f'buffer_store_dwordx4 {vr(acc+4*i,4)}, v2, s[16:19], s41 offen offset:{1024*i}')
    a.label('K5_end')
    a('s_endpgm')
    a.end_kernel(168, 48)
    a.launch('k5_kernel', 192, 256, 4 * SLOT)

def k6(a):
    a.begin_kernel('k6_kernel')
    a('s_cmp_ge_u32 s2, 288')
    a('s_cbranch_scc1 K6_end')
    a(f's_load_dwordx2 s[4:5], s[0:1], {KA["out"]}')
    a(f's_load_dwordx2 s[10:11], s[0:1], {KA["ws"]}')
    wave_id(a, 3, 1)
    a('v_and_b32 v1, 63, v0')
    a('s_lshl_b32 s12, s2, 2')
    a('s_add_u32 s12, s12, s3')
    a(f's_mul_hi_u32 s13, s12, {-(-(1<<32)//18)}')
    a('s_mul_i32 s14, s13, 18')
    a('s_sub_u32 s14, s12, s14')
    a('s_lshl_b32 s12, s12, 12')
    a('s_mul_i32 s13, s13, 36864')
    a('s_lshl_b32 s14, s14, 6')
    a('s_add_u32 s13, s13, s14')
    a('v_lshlrev_b32 v2, 4, v1')
    a('v_and_b32 v3, 31, v1')
    a('v_mul_u32_u24 v3, 1152, v3')
    a('v_and_b32 v4, 32, v1')
    a('v_add_u32 v3, v3, v4')
    a('s_waitcnt lgkmcnt(0)')
    a.srd(16, 10, 4 * S * D * 4, WS_P)
    a.srd(20, 10, ACT, WS_H)
    a.srd(24, 4, ACT)
    a('buffer_load_dwordx4 v[72:75], v3, s[20:23], s13 offen')
    a('buffer_load_dwordx4 v[76:79], v3, s[20:23], s13 offen offset:16')
    for j in range(4):
        for i in range(4):
            a(f'buffer_load_dwordx4 {vr(8+16*j+4*i,4)}, v2, s[16:19], s12 offen offset:{1024*i}')
        a(f's_add_u32 s12, s12, {S*D*4}')
    a('s_waitcnt vmcnt(8)')
    for i in range(16):
        a(f'v_add_f32 v{8+i}, v{8+i}, v{24+i}')
    for i in range(8):
        unpack(a, 24 + 2 * i, 25 + 2 * i, 72 + i)
    a('s_waitcnt vmcnt(0)')
    for i in range(16):
        a(f'v_add_f32 v{40+i}, v{40+i}, v{56+i}')
    for i in range(16):
        a(f'v_add_f32 v{8+i}, v{8+i}, v{40+i}')
    for i in range(16):
        a(f'v_add_f32 v{8+i}, v{8+i}, v{24+i}')
    for i in range(8):
        a(f'v_cvt_pk_bf16_f32 v{72+i}, v{8+2*i}, v{9+2*i}')
    a('buffer_store_dwordx4 v[72:75], v3, s[24:27], s13 offen')
    a('buffer_store_dwordx4 v[76:79], v3, s[24:27], s13 offen offset:16')
    a.label('K6_end')
    a('s_endpgm')
    a.end_kernel(80, 32)
    a.launch('k6_kernel', 288, 256, 0)

def main(path):
    a = Asm()
    k1(a); k2(a); k3(a); k4(a); k5(a); k6(a)
    ref = open('sequential_preLN__ssm_conv_h3__glu_gated_reglu__prompt.s.ref').read().split('\n')
    hdr = [l for l in ref if l.startswith(';') and '@launch' not in l and 'Override' not in l and 'grid=ceil' not in l]
    open(path, 'w').write(a.text('\n'.join(hdr)))

if __name__ == '__main__':
    main(sys.argv[1] if len(sys.argv) > 1 else 'sequential_preLN__ssm_conv_h3__glu_gated_reglu__prompt.s')
```
